```python
import torch

def _softmax(x, axis=-1):
    return torch.softmax(x, dim=axis)
def _gelu(x):
    return torch.nn.functional.gelu(x, approximate="tanh")
def _silu(x):
    return torch.nn.functional.silu(x)
def _sigmoid(x):
    return torch.sigmoid(x)
def _layernorm(x, axis=-1, eps=1e-5):
    m = x.mean(dim=axis, keepdim=True)
    v = x.var(dim=axis, keepdim=True, unbiased=False)
    return (x - m) / torch.sqrt(v + eps)
def _scatter_add(tgt, idx, src, axis=0):
    return tgt.clone().index_add_(axis, idx, src)
def _segment_sum(src, seg, n):
    out = torch.zeros((n,) + src.shape[1:], dtype=src.dtype)
    return out.index_add_(0, seg, src)
def _pad(x, pw):
    flat = tuple(v for pair in reversed(pw) for v in pair)
    return torch.nn.functional.pad(x, flat)

kernel_name = 'sequential_preLN__sliding_block_cached__glu_gated_bilinear__decode'

def setup_inputs():

    _w = (lambda a: (lambda t: t.to(torch.bfloat16) if t.is_floating_point() else t)(torch.as_tensor(a)))
    def _A_setup():
        B, Sq, D = 8, 1, 512
        Hq, Hkv, Sk, Dh = 32, 8, 8192, 128
        assert Hq % Hkv == 0, (Hq, Hkv)
        return {
            "x": _w((lambda *s: torch.randn(*s, dtype=torch.bfloat16) * 0.05)(B, Sq, D)),
            "k_cache": _w((lambda *s: torch.randn(*s, dtype=torch.bfloat16) * 1.6)(B, Hkv, Sk, Dh)),
            "v_cache": _w((lambda *s: torch.randn(*s, dtype=torch.bfloat16) * 0.8)(B, Hkv, Sk, Dh)),
            "wq": _w((lambda *s: torch.randn(*s, dtype=torch.bfloat16) * 1.6)(D, Hq * Dh) * (D ** -0.5)),
            "wo": _w((lambda *s: torch.randn(*s, dtype=torch.bfloat16) * 0.8)(Hq * Dh, D) * ((Hq * Dh) ** -0.5)),
        }
    _A_in = _A_setup()

    def _B_setup():
        B, S, D, F = 8, 1, 512, 1792
        return {
            "x": _w((lambda *s: torch.randn(*s, dtype=torch.bfloat16) * 0.05)(B, S, D)),
            "w_gate": _w((lambda *s: torch.randn(*s, dtype=torch.bfloat16) * 0.4)(D, F) * (D ** -0.5)),
            "w_up": _w((lambda *s: torch.randn(*s, dtype=torch.bfloat16) * 0.4)(D, F) * (D ** -0.5)),
            "w_down": _w((lambda *s: torch.randn(*s, dtype=torch.bfloat16) * 0.4)(F, D) * (F ** -0.5)),
        }
    _B_in = _B_setup()

    return {
        "A_x": _A_in["x"],
        "A_k_cache": _A_in["k_cache"],
        "A_v_cache": _A_in["v_cache"],
        "A_wq": _A_in["wq"],
        "A_wo": _A_in["wo"],
        "B_x": _B_in["x"],
        "B_w_gate": _B_in["w_gate"],
        "B_w_up": _B_in["w_up"],
        "B_w_down": _B_in["w_down"],
    }

def reference(A_x, A_k_cache, A_v_cache, A_wq, A_wo, B_x, B_w_gate, B_w_up, B_w_down):
    def _A_ref(x, k_cache, v_cache, wq, wo):
        B, Sq, D = x.shape
        Hq, Dh = 32, 128
        Hkv, Sk = k_cache.shape[1], k_cache.shape[2]
        W = min(4096, max(256, Sk // 4))
        rep = Hq // Hkv
        q = (lambda x, *d: x.permute(*d))((x @ wq).reshape(B, Sq, Hq, Dh), 0, 2, 1, 3)
        k = (lambda x, n, axis: torch.repeat_interleave(x, n, dim=axis))(k_cache[:, :, Sk - W:, :], rep, axis=1)
        v = (lambda x, n, axis: torch.repeat_interleave(x, n, dim=axis))(v_cache[:, :, Sk - W:, :], rep, axis=1)
        scores = torch.einsum("bhqd,bhkd->bhqk", q, k) * (Dh ** -0.5)
        p = _softmax(scores, axis=-1)
        o = torch.einsum("bhqk,bhkd->bhqd", p, v)
        return (lambda x, *d: x.permute(*d))(o, 0, 2, 1, 3).reshape(B, Sq, Hq * Dh) @ wo

    def _B_ref(x, w_gate, w_up, w_down):
        g = torch.einsum("bsd,df->bsf", x, w_gate)
        u = torch.einsum("bsd,df->bsf", x, w_up)
        h = g * u
        return torch.einsum("bsf,fd->bsd", h, w_down)

    x = A_x
    h = x + _A_ref(_layernorm(x, axis=-1), A_k_cache, A_v_cache, A_wq, A_wo)
    h2 = h + _B_ref(_layernorm(h, axis=-1), B_w_gate, B_w_up, B_w_down)
    return h2
```

```python
NAME = "sequential_preLN__sliding_block_cached__glu_gated_bilinear__decode"
WS = 536870912
STAMP_OFF = WS - (1 << 20)

class Asm:
    def __init__(self):
        self.lines = []
        self.nlab = 0
    def __call__(self, s):
        for l in s.split("\n"):
            l = l.strip()
            if l:
                self.lines.append(("" if l.endswith(":") else "    ") + l)
    def label(self, base="L"):
        self.nlab += 1
        return "%s_%d" % (base, self.nlab)
    def text(self):
        return "\n".join(self.lines) + "\n"

def header(launch):
    return """; %s
.amdgcn_target "amdgcn-amd-amdhsa--gfx950"
.text
""" % launch

def kernel_begin(name):
    return """.globl %s
.p2align 8
.type %s,@function
%s:
""" % (name, name, name)

def kd(name, vgpr, sgpr=102, accum=None):
    if accum is None:
        accum = min(256, (vgpr + 3) // 4 * 4)
    return """.p2align 6
.amdhsa_kernel %s
  .amdhsa_next_free_vgpr %d
  .amdhsa_next_free_sgpr %d
  .amdhsa_accum_offset %d
  .amdhsa_group_segment_fixed_size 0
  .amdhsa_kernarg_size 96
  .amdhsa_user_sgpr_count 2
  .amdhsa_user_sgpr_kernarg_segment_ptr 1
  .amdhsa_system_sgpr_workgroup_id_x 1
  .amdhsa_float_denorm_mode_32 3
.end_amdhsa_kernel
""" % (name, vgpr, sgpr, accum)
```

```python
import re
def regs(tok):
    tok = tok.strip()
    tok = re.sub(r"^-|^abs\(|\)$", "", tok)
    m = re.fullmatch(r"([vs])(\d+)", tok)
    if m: return {(m.group(1), int(m.group(2)))}
    m = re.fullmatch(r"([vs])\[(\d+):(\d+)\]", tok)
    if m: return {(m.group(1), i) for i in range(int(m.group(2)), int(m.group(3)) + 1)}
    if tok == "vcc": return {("s", 106), ("s", 107)}
    if tok == "exec": return {("s", 126), ("s", 127)}
    return set()
TRANS = ("v_exp_f32", "v_log_f32", "v_rcp_f32", "v_rsq_f32", "v_sqrt_f32")
def parse(line):
    line = line.split(";")[0].strip()
    if not line or line.endswith(":") or line.startswith("."): return None
    parts = line.split(None, 1)
    op = parts[0]; rest = parts[1] if len(parts) > 1 else ""
    ops = [o.strip() for o in re.split(r",(?![^\[]*\])", rest)]
    toks = []
    for o in ops:
        toks.append(o.split()[0] if o.split() else "")
    d = dict(op=op, line=line, w=set(), r=set(), cls="other", dpp=("_dpp" in op), srcc=set())
    if op.startswith("v_mfma"):
        d["cls"] = "mfma"; d["w"] = regs(toks[0]); d["r"] = regs(toks[1]) | regs(toks[2]) | regs(toks[3]); d["srcc"] = regs(toks[3]); d["ab"] = regs(toks[1]) | regs(toks[2])
    elif op.startswith("v_permlane"):
        d["cls"] = "valu"; d["perml"] = True; d["w"] = regs(toks[0]) | regs(toks[1]); d["r"] = set(d["w"])
    elif op.startswith("v_cmp"):
        d["cls"] = "valu"; d["w"] = regs(toks[0]); d["r"] = set().union(*[regs(t) for t in toks[1:]])
    elif op.startswith("v_"):
        d["cls"] = "valu"; d["w"] = regs(toks[0]); d["r"] = set().union(*[regs(t) for t in toks[1:]]) if len(toks) > 1 else set()
        if "_co_" in op: d["w"] |= regs(toks[1])
        if op.startswith("v_fmac") or d["dpp"]: d["r"] |= regs(toks[0])
        if op.startswith("v_readfirstlane") or op.startswith("v_readlane"): d["rl"] = True
    elif op.startswith(("buffer_", "global_")):
        d["cls"] = "vmem"
        allr = [regs(t) for t in toks]
        if "load" in op:
            d["w"] = allr[0]; d["r"] = set().union(*allr[1:])
        else:
            d["r"] = set().union(*allr)
            if "x4" in op or "x3" in op:
                d["wide"] = allr[0] if op.startswith("buffer_") else allr[1]
    elif op.startswith("ds_"):
        d["cls"] = "ds"
        allr = [regs(t) for t in toks]
        if "read" in op: d["w"] = allr[0]; d["r"] = set().union(*allr[1:])
        else: d["r"] = set().union(*allr)
    elif op.startswith("s_"):
        d["cls"] = "salu"
    d["ws"] = (int(toks[0], 0) + 1) if op == "s_nop" else 1
    return d
def check(text):
    ins = [p for p in (parse(l) for l in text.split("\n")) if p]
    errs = []
    for i, c in enumerate(ins):
        dist = 0
        for k in range(i - 1, max(-1, i - 14), -1):
            p = ins[k]
            need = 0; why = ""
            vw = {x for x in p["w"] if x[0] == "v"}; sw = {x for x in p["w"] if x[0] == "s"}
            if p["cls"] == "valu":
                if c["cls"] == "valu" and c["dpp"] and vw & c["r"]: need, why = 2, "valu->dpp"
                if c.get("perml") and vw & c["r"]: need, why = 2, "valu->permlane"
                if c["cls"] == "mfma" and vw & c["r"]: need, why = 2, "valu->mfma"
                if c.get("rl") and vw & c["r"]: need, why = max(need, 1), "valu->readlane"
                if p["op"].startswith(TRANS) and c["cls"] in ("valu", "mfma") and not c["op"].startswith(TRANS) and vw & c["r"]: need, why = max(need, 1), "trans"
                if sw and c["cls"] == "valu" and sw & c["r"]: need, why = max(need, 2), "valu sgpr->valu"
                if sw and c["cls"] == "vmem" and sw & c["r"]: need, why = 5, "valu sgpr->vmem"
            if p["cls"] == "mfma":
                if c["cls"] == "mfma":
                    if vw & c["ab"]: need, why = 8, "mfma->mfma ab"
                    elif vw & c["srcc"] and vw != c["srcc"]: need, why = 6, "mfma->srcc overlap"
                elif c["cls"] in ("valu", "vmem", "ds") and vw & (c["r"] | c["w"]): need, why = 8, "mfma->use"
                if c["cls"] == "valu" and p["srcc"] & c["w"]: need, why = max(need, 3), "mfma srcc WAR"
            if p.get("wide") and c["cls"] in ("valu", "mfma") and p["wide"] & c["w"]: need, why = max(need, 2), "wide store WAR"
            if need > dist:
                errs.append("HAZARD %s need %d have %d:\n   %s\n   %s" % (why, need, dist, p["line"], c["line"]))
            dist += p["ws"]
    return errs
if __name__ == "__main__":
    import sys
    e = check(open(sys.argv[1]).read())
    print("\n".join(e) if e else "no hazards found")
```

```python
import sys, struct
from asmlib import *
import hazard

def f2u(x): return struct.unpack("<I", struct.pack("<f", x))[0]

Q_OFF = 0x000000
O_OFF = 0x080000
Y_OFF = 0x0C0000
P_OFF = 0x0E0000
T_OFF = 0x150000
WS_USE = 0x152000
OOB = 0x80000000
XB, XBS = 0, 1040
QR = 8448
QG = 24832
MX = 33024
LS = 33152
OB, OBW, OBH = 33280, 2112, 528
YB = 50176
HB = 58368
SB = 60416
HH = 60480
LDS_BYTES = 61440
KR, VR, WR, AC, TB = 16, 80, 144, 176, 208
M0 = 240
SPIN = 20000

class G(Asm):
    def __init__(self, diag):
        super().__init__()
        self.q = []
        self.diag = diag
        self.nst = 0
    def vm(self, name, text):
        self(text); self.q.append(name)
        assert len(self.q) <= 63 or True
    def wait(self, name):
        idx = max(i for i, n in enumerate(self.q) if n == name)
        n = len(self.q) - 1 - idx
        assert n <= 63
        self("s_waitcnt vmcnt(%d)" % n)
        self.q = self.q[idx + 1:]
    def wait_all(self):
        self("s_waitcnt vmcnt(0)"); self.q = []
    def stamp(self, i):
        if self.diag:
            self("s_memrealtime s[%d:%d]" % (64 + 2 * i, 65 + 2 * i))
    def v(self, a, n=1):
        return "v%d" % a if n == 1 else "v[%d:%d]" % (a, a + n - 1)
    def allreduce(self, op, rs, tmp, rowonly=False, steps=("quad_perm:[1,0,3,2]", "quad_perm:[2,3,0,1]", "row_half_mirror", "row_mirror")):
        pad = max(0, 2 - (len(rs) - 1))
        for st in steps:
            if pad: self("s_nop %d" % (pad - 1))
            for r in rs:
                self("%s_dpp v%d, v%d, v%d %s row_mask:0xf bank_mask:0xf" % (op, r, r, r, st))
        if rowonly: return
        for sw in ("v_permlane16_swap_b32", "v_permlane32_swap_b32"):
            for r, t in zip(rs, tmp): self("v_mov_b32 v%d, v%d" % (t, r))
            if pad: self("s_nop %d" % (pad - 1))
            elif len(rs) == 2: pass
            for r, t in zip(rs, tmp): self("%s v%d, v%d" % (sw, r, t))
            self("s_nop 0")
            for r, t in zip(rs, tmp): self("%s v%d, v%d, v%d" % (op, r, r, t))
    def sentinel_fold(self, regs, t):
        regs = list(regs)
        if len(regs) == 1:
            self("v_cmp_eq_u32 vcc, -1, v%d" % regs[0]); return
        if len(regs) == 2:
            self("v_max_u32 v%d, v%d, v%d" % (t, regs[0], regs[1])); rest = []
        else:
            self("v_max3_u32 v%d, v%d, v%d, v%d" % (t, regs[0], regs[1], regs[2])); rest = regs[3:]
        while len(rest) >= 2:
            self("v_max3_u32 v%d, v%d, v%d, v%d" % (t, t, rest[0], rest[1])); rest = rest[2:]
        if rest: self("v_max_u32 v%d, v%d, v%d" % (t, t, rest[0]))
        self("v_cmp_eq_u32 vcc, -1, v%d" % t)
    def poll_check(self, loads, regs, t, scnt="s55"):
        Lr = self.label("Lretry"); Lok = self.label("Lok")
        self("s_mov_b32 %s, 0" % scnt)
        self("%s:" % Lr)
        self.sentinel_fold(regs, t)
        self("s_cbranch_vccz %s" % Lok)
        for l in loads: self(l)
        self("s_add_u32 %s, %s, 1" % (scnt, scnt))
        self("s_cmp_lt_u32 %s, %d" % (scnt, SPIN))
        self("s_waitcnt vmcnt(0)")
        self("s_cbranch_scc1 %s" % Lr)
        self("%s:" % Lok)
    def transpose(self, src, nd, dst, dd):
        sel = "s53" if dd % 2 == 0 else "s54"
        for p in range(4):
            self("v_perm_b32 v%d, v%d, v%d, %s" % (dst + p, src + (2 * p + 1) * nd + dd // 2, src + 2 * p * nd + dd // 2, sel))

def gen(fname, diag=False, w2_before=8, g_before=4, g_instream=0, fastpath=True):
    a = G(diag)
    kn = NAME + "_kernel"
    a.stamp(0)
    if diag:
        for i in range(66, 96, 2): a("s_mov_b64 s[%d:%d], 0" % (i, i + 1))
    a("""
    s_cmp_ge_u32 s2, 256
    s_cbranch_scc1 L_end
    s_load_dwordx16 s[8:23], s[0:1], 0      ; x K V wq wo Bx wg wu
    s_load_dwordx8 s[24:31], s[0:1], 64     ; wd out dbg ws
    s_and_b32 s4, s2, 7                     ; kvh
    s_lshr_b32 s5, s2, 3                    ; bj
    s_lshr_b32 s6, s5, 2                    ; b
    s_and_b32 s7, s5, 3                     ; j
    v_lshrrev_b32 v2, 6, v0
    v_and_b32 v1, 63, v0                    ; lane
    s_getreg_b32 s52, hwreg(HW_REG_XCC_ID)
    v_readfirstlane_b32 s44, v2             ; wave
    s_and_b32 s52, s52, 15
    s_or_b32 s52, s52, 0x80                 ; token
    s_mov_b32 s53, 0x05040100
    s_mov_b32 s54, 0x07060302
    ; KV base
    s_lshl_b32 s3, s6, 3
    s_add_u32 s3, s3, s4
    s_lshl_b32 s3, s3, 21
    s_lshl_b32 s55, s7, 17
    s_add_u32 s3, s3, s55
    s_add_u32 s3, s3, %d
    s_add_u32 s55, s44, s5                  ; w + bj
    """ % (6144 * 256))
    for t in range(4):
        a("s_add_u32 s56, s55, %d\ns_and_b32 s56, s56, 31\ns_lshl_b32 s56, s56, 12\ns_add_u32 s%d, s56, s3" % (8 * t, 45 + t))
    a("""
    v_and_b32 v2, 15, v1                    ; n/m = l&15
    v_lshrrev_b32 v3, 4, v1                 ; g = l>>4
    v_lshlrev_b32 v4, 4, v1                 ; l*16  (V voffset)
    v_lshrrev_b32 v5, 2, v2
    v_lshlrev_b32 v5, 8, v5
    v_lshl_add_u32 v5, v3, 6, v5
    v_and_b32 v6, 3, v1
    v_lshl_add_u32 v5, v6, 4, v5            ; K voffset
    v_lshlrev_b32 v6, 4, v0                 ; tid*16
    v_lshlrev_b32 v7, 15, v3
    v_lshl_add_u32 v7, v2, 3, v7
    s_and_b32 s49, s7, 1
    s_lshl_b32 s55, s6, 1
    s_add_u32 s49, s49, s55
    s_lshr_b32 s55, s5, 3                   ; kq
    s_lshl_b32 s57, s55, 20
    s_lshl_b32 s56, s44, 17
    s_add_u32 s57, s57, s56
    s_lshl_b32 s56, s4, 10
    s_add_u32 s57, s57, s56
    s_and_b32 s58, s5, 7                    ; cbq
    s_lshl_b32 s56, s58, 7
    s_add_u32 s57, s57, s56
    s_waitcnt lgkmcnt(0)
    """)
    a.stamp(1)
    a("""
    s_mov_b64 s[40:41], s[20:21]            ; wg
    s_mov_b64 s[42:43], s[22:23]            ; wu
    s_cmp_lt_u32 s7, 2
    s_cselect_b32 s36, s16, s24             ; W2 = wo (S_O) / wd (S_F)
    s_cselect_b32 s37, s17, s25
    s_mov_b32 s39, %d
    s_cselect_b32 s38, s39, %d
    s_mov_b32 s39, 0x20000
    s_mov_b64 s[32:33], s[26:27]            ; out
    s_mov_b32 s34, 8192
    s_mov_b32 s35, 0x20000
    s_mov_b64 s[24:25], s[30:31]            ; ws
    s_mov_b32 s26, %d
    s_mov_b32 s27, 0x20000
    s_mov_b32 s30, 256                      ; dbg s[28:31]
    s_mov_b32 s31, 0x20000
    s_mov_b64 s[20:21], s[14:15]            ; wq
    s_mov_b32 s22, 0x400000
    s_mov_b32 s23, 0x20000
    s_mov_b64 s[16:17], s[8:9]              ; x
    s_mov_b32 s18, 8192
    s_mov_b32 s19, 0x20000
    s_mov_b32 s14, 0x8000000                ; V s[12:15]
    s_mov_b32 s15, 0x20000
    s_mov_b64 s[8:9], s[10:11]              ; K s[8:11]
    s_mov_b32 s10, 0x8000000
    s_mov_b32 s11, 0x20000
    """ % (0x400000, 1792 * 512 * 2, WS if diag else WS_USE))
    def kload(i): a.vm("K%d" % i, "buffer_load_dwordx4 %s, v5, s[8:11], s%d offen offset:%d nt" % (a.v(KR + 4 * i, 4), 45 + i // 4, (i % 4) * 1024))
    def vload(i): a.vm("V%d" % i, "buffer_load_dwordx4 %s, v4, s[12:15], s%d offen offset:%d nt" % (a.v(VR + 4 * i, 4), 45 + i // 4, (i % 4) * 1024))
    X0 = TB
    WQ = AC
    a.vm("x", "buffer_load_dwordx4 %s, v6, s[16:19], 0 offen" % a.v(X0, 4))
    for jj in range(4):
        if jj: a("s_add_u32 s57, s57, 8192")
        a.vm("wq", "buffer_load_dwordx2 %s, v7, s[20:23], s57 offen nt" % a.v(WQ + 2 * jj, 2))
    a("""
    s_lshl_b32 s56, s4, 16                  ; kvh*8*4*2048
    s_lshl_b32 s59, s55, 11                 ; kq*2048
    s_add_u32 s56, s56, s59
    s_lshl_b32 s59, s58, 8                  ; cbq*256
    s_add_u32 s56, s56, s59
    s_lshl_b32 s59, s44, 13                 ; b(=wave)*8192
    s_add_u32 s56, s56, s59
    v_lshlrev_b32 v11, 2, v1                ; lane*4
    v_add_u32 v8, s56, v11                  ; Q_OFF = 0
    v_mov_b32 v12, -1
    v_mov_b32 v13, -1
    v_mov_b32 v14, -1
    v_mov_b32 v15, -1
    """)
    a.vm("clr", "buffer_store_dword v12, v8, s[24:27], 0 offen sc1")
    a("""
    s_lshl_b32 s56, s4, 5
    s_add_u32 s56, s56, s5                  ; kvh*32+bj
    s_lshl_b32 s59, s56, 10
    s_add_u32 s59, s59, %d                  ; o outbox base
    v_lshlrev_b32 v9, 2, v0
    v_add_u32 v9, s59, v9                   ; tid*4 + base (tid<256)
    ; stats address for tid 256..263: T_OFF + ((kvh*8+b)*4+h)*32 + j*8 + which*4, h=(t>>1)&3, which=t&1
    s_lshl_b32 s59, s4, 3
    s_add_u32 s59, s59, s6
    s_lshl_b32 s59, s59, 7
    s_lshl_b32 s60, s7, 3
    s_add_u32 s59, s59, s60
    s_add_u32 s59, s59, %d                  ; s59 = stats base for (kvh,b,j)
    v_lshrrev_b32 v%d, 1, v1
    v_lshlrev_b32 v%d, 5, v%d
    v_and_b32 v%d, 1, v1
    v_lshl_add_u32 v%d, v%d, 2, v%d
    v_add_u32 v%d, s59, v%d
    v_mov_b32 v%d, 0x%x
    s_movk_i32 s60, 264
    v_cmp_gt_u32 vcc, s60, v0
    s_movk_i32 s60, 256
    v_cmp_gt_u32 s[62:63], s60, v0
    v_cndmask_b32 v%d, v%d, v%d, vcc
    s_nop 0
    v_cndmask_b32 v9, v%d, v9, s[62:63]
    """ % (O_OFF, T_OFF, M0, M0, M0, M0 + 1, M0, M0 + 1, M0, M0, M0, M0 + 1, OOB, M0, M0 + 1, M0, M0))
    a.vm("clr", "buffer_store_dword v12, v9, s[24:27], 0 offen sc1")
    a("""
    s_cmp_lt_u32 s7, 2
    s_cbranch_scc0 L_roleF_addr
    ; S_O: cb = so&7, half = so>>3.  clear addr (wave0): Y + ((4half+g)*8+kvh)*2048 + cb*256 + n*16
    s_and_b32 s60, s49, 7
    s_lshr_b32 s61, s49, 3
    s_lshl_b32 s50, s4, 19
    s_lshl_b32 s62, s44, 16
    s_add_u32 s50, s50, s62
    s_lshl_b32 s62, s60, 7
    s_add_u32 s50, s50, s62                 ; W2 soffset = (kvh*512+64w)*1024 + cb*128
    s_lshl_b32 s62, s61, 16
    s_lshl_b32 s63, s4, 11
    s_add_u32 s62, s62, s63
    s_lshl_b32 s63, s60, 8
    s_add_u32 s62, s62, s63
    s_add_u32 s62, s62, %d                  ; Y base for (half,kvh,cb)
    s_mov_b32 s51, s62
    s_cmp_eq_u32 s44, 0
    s_cselect_b32 s62, s62, 0x%x
    v_lshlrev_b32 v10, 14, v3
    v_lshl_add_u32 v10, v2, 4, v10
    v_add_u32 v10, s62, v10
    s_branch L_role_addr_done
    L_roleF_addr:
    ; S_F: fl = sf>>2, bp = sf&3, f = kvh*4+fl.  P addr = (((2bp+(g&1))*28+f)*512 + 64w + 4n)*4, lanes g<2
    s_lshr_b32 s60, s49, 2
    s_lshl_b32 s61, s4, 2
    s_add_u32 s60, s60, s61                 ; f
    s_and_b32 s61, s49, 3                   ; bp
    s_lshl_b32 s50, s60, 16
    s_lshl_b32 s62, s44, 7
    s_add_u32 s50, s50, s62                 ; W2 soffset = 64f*1024 + w*128
    s_mul_i32 s62, s61, %d
    s_lshl_b32 s63, s60, 11
    s_add_u32 s62, s62, s63
    s_lshl_b32 s63, s44, 8
    s_add_u32 s62, s62, s63
    s_add_u32 s62, s62, %d
    s_cmp_lt_u32 s4, 7
    s_cselect_b32 s62, s62, 0x%x
    s_mov_b32 s51, s60                      ; keep f
    v_mul_u32_u24 v10, %d, v3
    v_lshl_add_u32 v10, v2, 4, v10
    v_add_u32 v10, s62, v10
    v_mov_b32 v%d, 0x%x
    v_cmp_gt_u32 vcc, 32, v1
    s_nop 1
    v_cndmask_b32 v10, v%d, v10, vcc
    L_role_addr_done:
    """ % (Y_OFF, OOB, 2 * 28 * 2048, P_OFF, OOB, 28 * 2048, M0, OOB, M0))
    a.vm("clr", "buffer_store_dwordx4 v[12:15], v10, s[24:27], 0 offen sc1")
    for i in range(4): kload(i)
    a("""
    s_getpc_b64 s[60:61]
    L_pc:
    v_lshlrev_b32 v%d, 6, v0
    v_min_u32 v%d, (L_end - L_pc), v%d
    """ % (M0, M0, M0))
    a.vm("code", "global_load_dword v%d, v%d, s[60:61]" % (M0 + 1, M0))
    a.wait("x")
    F = TB + 4
    for i in range(4):
        a("v_lshlrev_b32 v%d, 16, v%d" % (F + 2 * i, X0 + i))
        a("v_and_b32 v%d, 0xffff0000, v%d" % (F + 2 * i + 1, X0 + i))
    S = TB + 12; T1 = TB + 13; D = TB + 16
    a("v_add_f32 v%d, v%d, v%d" % (S, F, F + 1))
    for i in range(2, 8): a("v_add_f32 v%d, v%d, v%d" % (S, S, F + i))
    a.allreduce("v_add_f32", [S], [T1])
    a("v_mul_f32 v%d, 0x%x, v%d" % (S, f2u(1.0 / 512), S))
    for i in range(8): a("v_sub_f32 v%d, v%d, v%d" % (D + i, F + i, S))
    Q2 = TB + 14
    a("v_mul_f32 v%d, v%d, v%d" % (Q2, D, D))
    for i in range(1, 8): a("v_fmac_f32 v%d, v%d, v%d" % (Q2, D + i, D + i))
    a.allreduce("v_add_f32", [Q2], [T1])
    a("v_mul_f32 v%d, 0x%x, v%d" % (Q2, f2u(1.0 / 512), Q2))
    def ln_scale(mean, var, tmp):
        a("v_cvt_pk_bf16_f32 v%d, v%d, v%d" % (tmp, mean, var))
        a("v_lshlrev_b32 v%d, 16, v%d" % (mean, tmp))
        a("v_and_b32 v%d, 0xffff0000, v%d" % (var, tmp))
        a("v_add_f32 v%d, 0x%x, v%d" % (var, f2u(1e-5), var))
        a("v_cvt_pk_bf16_f32 v%d, v%d, v%d" % (tmp, var, var))
        a("v_lshlrev_b32 v%d, 16, v%d" % (var, tmp))
        a("v_sqrt_f32 v%d, v%d" % (var, var))
        a("s_nop 0")
        a("v_cvt_pk_bf16_f32 v%d, v%d, v%d" % (tmp, var, var))
        a("v_lshlrev_b32 v%d, 16, v%d" % (var, tmp))
        a("v_rcp_f32 v%d, v%d" % (var, var))
    ln_scale(S, Q2, T1)
    for i in range(8): a("v_sub_f32 v%d, v%d, v%d" % (D + i, F + i, S))
    for i in range(4):
        a("v_cvt_pk_bf16_f32 v%d, v%d, v%d" % (X0 + i, D + 2 * i, D + 2 * i + 1))
    for i in range(4):
        a("v_lshlrev_b32 v%d, 16, v%d" % (F + 2 * i, X0 + i))
        a("v_and_b32 v%d, 0xffff0000, v%d" % (F + 2 * i + 1, X0 + i))
    for i in range(8): a("v_mul_f32 v%d, v%d, v%d" % (F + i, F + i, Q2))
    for i in range(4):
        a("v_cvt_pk_bf16_f32 v%d, v%d, v%d" % (X0 + i, F + 2 * i, F + 2 * i + 1))
    a("s_mul_i32 s60, s44, %d" % XBS)
    a("v_add_u32 v%d, s60, v4" % M0)
    a("ds_write_b128 v%d, %s offset:%d" % (M0, a.v(X0, 4), XB))
    a.wait("clr")
    a("s_waitcnt lgkmcnt(0)")
    a("s_barrier")
    a.stamp(2)
    a("""
    v_mov_b32 v%d, s52
    v_mov_b32 v%d, s56
    v_mov_b32 v%d, 0x%x
    v_cmp_eq_u32 vcc, 0, v0
    s_nop 1
    v_cndmask_b32 v%d, v%d, v%d, vcc
    """ % (M0 + 2, M0 + 3, M0 + 4, OOB, M0 + 3, M0 + 4, M0 + 3))
    a.vm("tok", "buffer_store_byte v%d, v%d, s[28:31], 0 offen sc1" % (M0 + 2, M0 + 3))
    for i in range(4, 8): kload(i)
    a("""
    v_and_b32 v%d, 7, v1
    v_mul_u32_u24 v%d, %d, v%d
    v_lshl_add_u32 v%d, v3, 3, v%d
    s_lshl_b32 s60, s55, 8
    s_lshl_b32 s61, s44, 5
    s_add_u32 s60, s60, s61
    v_add_u32 v%d, s60, v%d
    ds_read_b64 %s, v%d offset:%d
    """ % (M0, M0, XBS, M0, M0, M0, M0, M0, a.v(TB, 2), M0, XB))
    QA = AC + 8
    for dd in range(4):
        sel = "s53" if dd % 2 == 0 else "s54"
        for p in range(2):
            a("v_perm_b32 v%d, v%d, v%d, %s" % (QA + 2 * dd + p, WQ + (2 * p + 1) * 2 + dd // 2, WQ + 2 * p * 2 + dd // 2, sel))
    a("s_waitcnt lgkmcnt(0)")
    a("s_nop 0")
    QD = AC + 16
    for dd in range(4):
        a("v_mfma_f32_16x16x16_bf16 %s, %s, %s, 0" % (a.v(QD + 4 * dd, 4), a.v(QA + 2 * dd, 2), a.v(TB, 2)))
    a("""
    s_lshl_b32 s60, s44, 11
    v_lshlrev_b32 v%d, 8, v2
    v_lshl_add_u32 v%d, v3, 6, v%d
    v_add_u32 v%d, s60, v%d
    v_cmp_gt_u32 vcc, 8, v2
    s_and_saveexec_b64 s[62:63], vcc
    s_nop 2
    """ % (M0, M0, M0, M0, M0))
    for dd in range(4):
        a("ds_write_b128 v%d, %s offset:%d" % (M0, a.v(QD + 4 * dd, 4), QR + dd * 16))
    a("s_mov_b64 exec, s[62:63]")
    a("""
    v_and_b32 v%d, 3, v1
    v_lshlrev_b32 v%d, 4, v%d
    v_bfe_u32 v%d, v1, 2, 2
    v_lshl_add_u32 v%d, v%d, 2, v%d
    v_lshl_add_u32 v%d, v3, 6, v%d
    s_lshl_b32 s60, s44, 8
    s_add_u32 s60, s60, %d
    v_add_u32 v%d, s60, v%d
    s_waitcnt lgkmcnt(0)
    s_barrier
    """ % (M0, M0, M0, M0 + 2, M0, M0 + 2, M0, M0, M0, QR, M0, M0))
    for i in range(4):
        a("ds_read2st64_b32 %s, v%d offset0:%d offset1:%d" % (a.v(TB + 2 * i, 2), M0, 16 * i, 16 * i + 8))
    a("s_waitcnt lgkmcnt(0)")
    for i in range(1, 8): a("v_add_f32 v%d, v%d, v%d" % (TB, TB, TB + i))
    a("v_min_u32 v%d, -2, v%d" % (TB, TB))
    a.vm("qst", "buffer_store_dword v%d, v8, s[24:27], 0 offen sc1" % TB)
    a.stamp(3)
    for i in range(8, 12): kload(i)
    tokload = "buffer_load_dword v%d, v11, s[28:31], 0 offen sc1" % (M0 + 2)
    a.wait("K7")
    a.vm("tokl", tokload)
    for i in range(12, 16): kload(i)
    a.wait("tokl")
    a("""
    s_mov_b32 s55, 0
    s_mov_b32 s60, 0x80808080
    L_tok:
    v_and_b32 v%d, s60, v%d
    v_cmp_ne_u32 vcc, s60, v%d
    s_cbranch_vccz L_tok_ok
    %s
    s_add_u32 s55, s55, 1
    s_cmp_lt_u32 s55, %d
    s_waitcnt vmcnt(0)
    s_cbranch_scc1 L_tok
    L_tok_ok:
    s_mul_i32 s60, s52, 0x01010101
    v_cmp_ne_u32 vcc, s60, v%d
    s_lshl_b32 s61, s4, 3
    s_lshr_b64 s[62:63], vcc, s61
    s_and_b32 s52, s62, 0xff                ; s52 == 0 -> whole kv group on one XCD (fast hand-off)
    """ % (M0 + 3, M0 + 2, M0 + 3, tokload, SPIN, M0 + 2))
    a.stamp(4)
    a("""
    s_lshl_b32 s58, s4, 3
    s_add_u32 s58, s58, s6
    s_lshl_b32 s58, s58, 13                 ; (kvh*8+b)*8192
    """)
    qload = "buffer_load_dwordx4 %s, v6, s[24:27], s58 offen sc1" % a.v(TB, 4)
    a.vm("ql", qload)
    for i in range(0, 8): vload(i)
    a.wait("ql")
    a.poll_check([qload], range(TB, TB + 4), M0)
    a("ds_write_b128 v6, %s offset:%d" % (a.v(TB, 4), QG))
    a("""
    v_and_b32 v%d, 3, v1
    v_lshlrev_b32 v%d, 9, v%d
    v_lshrrev_b32 v%d, 2, v1
    v_lshl_add_u32 v%d, v%d, 5, v%d
    s_waitcnt lgkmcnt(0)
    s_barrier
    """ % (M0, M0, M0, M0 + 2, M0, M0 + 2, M0))
    a.stamp(5)
    for kq in range(4):
        for hf in range(2):
            a("ds_read_b128 %s, v%d offset:%d" % (a.v(TB + kq * 8 + hf * 4, 4), M0, QG + kq * 2048 + hf * 16))
    a("s_waitcnt lgkmcnt(0)")
    for i in range(8):
        a("v_add_f32 v%d, v%d, v%d" % (TB + i, TB + i, TB + 8 + i))
        a("v_add_f32 v%d, v%d, v%d" % (TB + 16 + i, TB + 16 + i, TB + 24 + i))
    for i in range(8): a("v_add_f32 v%d, v%d, v%d" % (TB + i, TB + i, TB + 16 + i))
    QO = M0 + 4
    for i in range(4): a("v_cvt_pk_bf16_f32 v%d, v%d, v%d" % (QO + i, TB + 2 * i, TB + 2 * i + 1))
    a("s_nop 1")
    for i in range(16):
        a("v_mfma_f32_16x16x32_bf16 %s, %s, %s, 0" % (a.v(AC + 4 * i, 4), a.v(KR + 4 * i, 4), a.v(QO, 4)))
    T = M0 + 8
    for t in range(4):
        for step in range(3):
            for ai in range(4):
                i = ai * 4 + t
                c = [x for x in range(4) if x != t][step]
                n = (4 * (t - c)) % 16
                src1 = AC + 4 * i + t if step == 0 else T + ai
                if t == 0 and step == 0 and ai == 3: a("s_nop 1")
                a("v_add_f32_dpp v%d, v%d, v%d row_ror:%d row_mask:0xf bank_mask:0x%x" % (T + ai, AC + 4 * i + c, src1, n, 1 << t))
    def round4():
        a("v_cvt_pk_bf16_f32 v%d, v%d, v%d" % (M0, T, T + 1))
        a("v_cvt_pk_bf16_f32 v%d, v%d, v%d" % (M0 + 1, T + 2, T + 3))
        a("v_lshlrev_b32 v%d, 16, v%d" % (T, M0))
        a("v_and_b32 v%d, 0xffff0000, v%d" % (T + 1, M0))
        a("v_lshlrev_b32 v%d, 16, v%d" % (T + 2, M0 + 1))
        a("v_and_b32 v%d, 0xffff0000, v%d" % (T + 3, M0 + 1))
    round4()
    for i in range(4): a("v_mul_f32 v%d, 0x%x, v%d" % (T + i, f2u(128 ** -0.5), T + i))
    round4()
    MM = M0 + 2
    a("v_max3_f32 v%d, v%d, v%d, v%d" % (MM, T, T + 1, T + 2))
    a("v_max_f32 v%d, v%d, v%d" % (MM, MM, T + 3))
    a.allreduce("v_max_f32", [MM], [M0 + 3], steps=("row_ror:4", "row_ror:8"))
    a("""
    s_lshl_b32 s60, s44, 4
    v_add_u32 v%d, s60, v11
    v_and_b32 v%d, 12, v11
    s_mov_b64 exec, 15
    ds_write_b32 v%d, v%d offset:%d
    s_mov_b64 exec, -1
    s_waitcnt lgkmcnt(0)
    s_barrier
    """ % (M0, M0 + 1, M0, MM, MX))
    for i in range(4):
        a("ds_read2_b32 %s, v%d offset0:%d offset1:%d" % (a.v(TB + 2 * i, 2), M0 + 1, 8 * i, 8 * i + 4).replace("offset0", "offset0") if False else
          "ds_read_b32 v%d, v%d offset:%d\nds_read_b32 v%d, v%d offset:%d" % (TB + 2 * i, M0 + 1, MX + 32 * i, TB + 2 * i + 1, M0 + 1, MX + 32 * i + 16))
    a("s_waitcnt lgkmcnt(0)")
    a("v_max3_f32 v%d, v%d, v%d, v%d" % (MM, TB, TB + 1, TB + 2))
    a("v_max3_f32 v%d, v%d, v%d, v%d" % (MM, MM, TB + 3, TB + 4))
    a("v_max3_f32 v%d, v%d, v%d, v%d" % (MM, MM, TB + 5, TB + 6))
    a("v_max_f32 v%d, v%d, v%d" % (MM, MM, TB + 7))
    LOG2E = f2u(1.4426950408889634)
    for i in range(4): a("v_sub_f32 v%d, v%d, v%d" % (T + i, T + i, MM))
    for i in range(4): a("v_mul_f32 v%d, 0x%x, v%d" % (T + i, LOG2E, T + i))
    for i in range(4): a("v_exp_f32 v%d, v%d" % (T + i, T + i))
    LL = M0 + 3
    a("s_nop 0")
    a("v_add_f32 v%d, v%d, v%d" % (LL, T, T + 1))
    a("v_add_f32 v%d, v%d, v%d" % (TB, T + 2, T + 3))
    a("v_add_f32 v%d, v%d, v%d" % (LL, LL, TB))
    a.allreduce("v_add_f32", [LL], [TB], steps=("row_ror:4", "row_ror:8"))
    a("""
    s_mov_b64 exec, 15
    ds_write_b32 v%d, v%d offset:%d
    s_mov_b64 exec, -1
    """ % (M0, LL, LS))
    PO = [M0 + 4, M0 + 12]
    for ai in range(4):
        for k in range(3):
            a("v_mov_b32_dpp v%d, v%d row_ror:%d row_mask:0xf bank_mask:0xf" % (TB + 3 * ai + k, T + ai, 12 - 4 * k))
    for ai in range(4):
        dst = PO[ai // 2] + 2 * (ai % 2)
        a("v_cvt_pk_bf16_f32 v%d, v%d, v%d" % (dst, T + ai, TB + 3 * ai))
        a("v_cvt_pk_bf16_f32 v%d, v%d, v%d" % (dst + 1, TB + 3 * ai + 1, TB + 3 * ai + 2))
    a("s_waitcnt lgkmcnt(0)")
    a("s_barrier")
    a("""
    v_lshlrev_b32 v%d, 1, v1
    v_and_b32 v%d, 12, v%d
    """ % (M0, M0, M0))
    for i in range(8):
        a("ds_read_b32 v%d, v%d offset:%d" % (TB + i, M0, LS + 16 * i))
    a("ds_bpermute_b32 v%d, v%d, v%d" % (TB + 8, M0, MM))
    a("s_waitcnt lgkmcnt(0)")
    for i in range(1, 8): a("v_add_f32 v%d, v%d, v%d" % (TB, TB, TB + i))
    a("""
    v_and_b32 v%d, 1, v1
    v_cmp_eq_u32 vcc, 1, v%d
    v_mov_b32 v%d, 0x%x
    s_cmp_eq_u32 s44, 4
    v_cndmask_b32 v%d, v%d, v%d, vcc
    s_cselect_b64 vcc, -1, 0
    v_min_u32 v%d, -2, v%d
    v_cndmask_b32 v%d, v%d, v9, vcc
    """ % (M0, M0, M0 + 1, OOB, TB, TB + 8, TB, TB, TB, M0 + 1, M0 + 1))
    a.vm("stst", "buffer_store_dword v%d, v%d, s[24:27], 0 offen sc1" % (TB, M0 + 1))
    a.stamp(6)
    a("""
    s_cmp_lt_u32 s7, 2
    s_cbranch_scc1 L_pathO
    s_cmp_lt_u32 s4, 7
    s_cbranch_scc1 L_pathF
    """)
    qsave = list(a.q)

    def w2load(i):
        s, jj = divmod(i, 8)
        off = (32 * s + 8 * (jj & 3) + (jj >> 2)) * 1024
        a("s_add_u32 s60, s50, %d" % (off & ~1024))
        a.vm("W%d" % i, "buffer_load_dwordx2 %s, v7, s[36:39], s60 offen offset:%d nt" % (a.v(WR + 2 * i, 2), off & 1024))
    GA = 12
    def gload(i):
        s, jj = divmod(i, 8)
        if jj % 2 == 0 and i > 0:
            step = 2 * 3584 if jj > 0 else (32 - 6) * 3584
            a("s_mov_b32 s62, %d\ns_mov_b32 s63, 0" % step)
            a("v_lshl_add_u64 v[12:13], v[12:13], 0, s[62:63]")
        a.vm("G%d" % i, "global_load_dwordx4 %s, v[12:13], off offset:%d nt" % (a.v(KR + 4 * i, 4), 3584 * (jj % 2)))
    def pv(u):
        for dd in range(8):
            tmp = TB + 4 * (dd % 4)
            a.transpose(VR + 32 * u, 4, tmp, dd)
            if dd > 0:
                d0 = dd - 1
                a("v_mfma_f32_16x16x32_bf16 %s, %s, %s, %s" % (a.v(AC + 4 * d0, 4), a.v(TB + 4 * (d0 % 4), 4), a.v(PO[u], 4), "0" if u == 0 else a.v(AC + 4 * d0, 4)))
        a("s_nop 0")
        a("v_mfma_f32_16x16x32_bf16 %s, %s, %s, %s" % (a.v(AC + 28, 4), a.v(TB + 12, 4), a.v(PO[u], 4), "0" if u == 0 else a.v(AC + 28, 4)))

    def late(role):
        a.q = list(qsave)
        a("v_lshlrev_b32 v7, 11, v3\nv_lshl_add_u32 v7, v2, 3, v7")
        rest = []
        if role == "F":
            a("""
            v_mov_b32 v12, s40
            v_mov_b32 v13, s41
            v_mov_b32 v14, s42
            v_mov_b32 v15, s43
            v_cmp_lt_u32 vcc, 7, v2
            s_mul_i32 s60, s44, %d
            s_lshl_b32 s61, s51, 7
            v_cndmask_b32 v12, v12, v14, vcc
            v_cndmask_b32 v13, v13, v15, vcc
            s_add_u32 s60, s60, s61
            v_mul_u32_u24 v14, %d, v3
            v_and_b32 v15, 7, v1
            v_lshl_add_u32 v14, v15, 4, v14
            v_add_u32 v14, s60, v14
            v_mov_b32 v15, 0
            v_lshl_add_u64 v[12:13], v[12:13], 0, v[14:15]
            """ % (64 * 3584, 8 * 3584))
            rest = [("g", i) for i in range(16)] + [("w", i) for i in range(16)]
            nb = g_before
        else:
            rest = [("w", i) for i in range(16)]
            nb = w2_before
        def issue(n):
            for _ in range(n):
                if rest:
                    k, i = rest.pop(0)
                    (gload if k == "g" else w2load)(i)
        for i in range(8, 16):
            vload(i)
            if role == "F" and i - 8 < g_instream: issue(1)
        XR = M0 + 8
        ST = M0 + 8
        if role == "F":
            a("s_and_b32 s61, s49, 3\ns_lshl_b32 s61, s61, 11")
            a("v_lshlrev_b32 v%d, 2, v0" % (M0))
            a.vm("xr", "buffer_load_dword v%d, v%d, s[16:19], s61 offen" % (XR, M0))
        else:
            a("s_lshl_b32 s61, s4, 10\ns_lshl_b32 s60, s49, 6\ns_add_u32 s61, s61, s60")
            a("v_and_b32 v%d, 7, v1\nv_lshlrev_b32 v%d, 3, v%d" % (M0, M0, M0))
            a.vm("xr", "buffer_load_dwordx2 %s, v%d, s[16:19], s61 offen" % (a.v(XR, 2), M0))
            a("""
            s_lshr_b32 s60, s49, 3
            s_lshl_b32 s60, s60, 2
            s_lshl_b32 s61, s4, 3
            s_add_u32 s60, s60, s61
            s_lshl_b32 s58, s60, 12                 ; o inbox base index*4096
            s_lshl_b32 s60, s60, 7
            s_lshr_b32 s61, s44, 1
            s_lshl_b32 s61, s61, 5
            s_add_u32 s59, s60, s61
            s_add_u32 s59, s59, %d
            v_lshlrev_b32 v14, 7, v3
            """ % T_OFF)
            stl = ["buffer_load_dwordx4 %s, v14, s[24:27], s59 offen sc1" % a.v(KR, 4), "buffer_load_dwordx4 %s, v14, s[24:27], s59 offen offset:16 sc1" % a.v(KR + 4, 4)]
            for l in stl: a.vm("stl", l)
        a.wait("V7")
        pv(0)
        issue(nb)
        a("""
        s_mul_i32 s60, s44, %d
        v_mul_u32_u24 v%d, %d, v2
        v_lshl_add_u32 v%d, v3, 7, v%d
        v_add_u32 v%d, s60, v%d
        s_mul_i32 s60, s44, %d
        v_lshlrev_b32 v%d, 3, v1
        v_add_u32 v%d, s60, v%d
        s_mov_b32 s62, 0x000f000f
        s_mov_b32 s63, 0x000f000f
        """ % (OBW, M0, OBH, M0, M0, M0, M0, OBH, M0 + 1, M0 + 1, M0 + 1))
        a.wait("V15")
        a.stamp(7)
        pv(1)
        a("s_mov_b64 exec, s[62:63]")
        for dd in range(8):
            if dd == 7: a("s_nop 0")
            a("ds_write_b128 v%d, %s offset:%d" % (M0, a.v(AC + 4 * dd, 4), OB + 16 * dd))
        a("s_mov_b64 exec, -1")
        a("s_waitcnt lgkmcnt(0)")
        a("s_barrier")
        Lskip = a.label("Lo_skip"); Lslow = a.label("Lo_slow")
        a("s_cmp_ge_u32 s44, 4\ns_cbranch_scc1 %s" % Lskip)
        for i in range(8):
            a("ds_read_b64 %s, v%d offset:%d" % (a.v(TB + 2 * i, 2), M0 + 1, OB + OBW * i))
        a("s_waitcnt lgkmcnt(4)")
        a("v_pk_add_f32 %s, %s, %s" % (a.v(TB, 2), a.v(TB, 2), a.v(TB + 2, 2)))
        a("v_pk_add_f32 %s, %s, %s" % (a.v(TB + 4, 2), a.v(TB + 4, 2), a.v(TB + 6, 2)))
        a("s_waitcnt lgkmcnt(0)")
        a("v_pk_add_f32 %s, %s, %s" % (a.v(TB + 8, 2), a.v(TB + 8, 2), a.v(TB + 10, 2)))
        a("v_pk_add_f32 %s, %s, %s" % (a.v(TB + 12, 2), a.v(TB + 12, 2), a.v(TB + 14, 2)))
        a("v_pk_add_f32 %s, %s, %s" % (a.v(TB, 2), a.v(TB, 2), a.v(TB + 4, 2)))
        a("v_pk_add_f32 %s, %s, %s" % (a.v(TB + 8, 2), a.v(TB + 8, 2), a.v(TB + 12, 2)))
        a("v_pk_add_f32 %s, %s, %s" % (a.v(TB, 2), a.v(TB, 2), a.v(TB + 8, 2)))
        a("v_cvt_pk_bf16_f32 v%d, v%d, v%d" % (TB, TB, TB + 1))
        a("v_min_u32 v%d, -2, v%d" % (TB, TB))
        if fastpath:
            a("s_cmp_lg_u32 s52, 0\ns_cbranch_scc1 %s" % Lslow)
            a("buffer_store_dword v%d, v9, s[24:27], 0 offen" % TB)
            a("s_branch %s" % Lskip)
            a("%s:" % Lslow)
        a("buffer_store_dword v%d, v9, s[24:27], 0 offen sc1" % TB)
        a("%s:" % Lskip)
        a.stamp(8)
        if role == "O":
            a("s_cmp_ge_u32 s7, 2\ns_cbranch_scc1 L_fin")
        issue(99)
        if role == "O": tailO(stl, XR)
        else: tailF(XR)

    def tailO(stl, XR):
        a("""
        s_lshl_b32 s60, s44, 7
        s_add_u32 s58, s58, s60
        s_add_u32 s58, s58, %d
        v_lshlrev_b32 v15, 10, v2
        v_lshl_add_u32 v15, v3, 4, v15
        """ % O_OFF)
        OA = KR + 8
        ol = ["buffer_load_dwordx4 %s, v15, s[24:27], s58 offen offset:%d sc1" % (a.v(OA + 4 * s, 4), 64 * s) for s in range(2)]
        for l in ol: a.vm("ol", l)
        a.wait("W15")
        a.poll_check(stl, range(KR, KR + 8), M0)
        WT = M0 + 4
        a("v_max3_f32 v%d, v%d, v%d, v%d" % (M0, KR, KR + 2, KR + 4))
        a("v_max_f32 v%d, v%d, v%d" % (M0, M0, KR + 6))
        for r in range(4): a("v_sub_f32 v%d, v%d, v%d" % (WT + r, KR + 2 * r, M0))
        for r in range(4): a("v_mul_f32 v%d, 0x%x, v%d" % (WT + r, LOG2E, WT + r))
        for r in range(4): a("v_exp_f32 v%d, v%d" % (WT + r, WT + r))
        a("s_nop 0")
        a("v_mul_f32 v%d, v%d, v%d" % (M0, WT, KR + 1))
        for r in range(1, 4): a("v_fmac_f32 v%d, v%d, v%d" % (M0, WT + r, KR + 2 * r + 1))
        a("v_rcp_f32 v%d, v%d" % (M0, M0))
        a("s_nop 0")
        for r in range(4): a("v_mul_f32 v%d, v%d, v%d" % (WT + r, WT + r, M0))
        for s in range(2):
            for dd in range(4):
                a.transpose(WR + 16 * s, 2, VR + 16 * s + 4 * dd, dd)
        a("s_lshl_b32 s60, s44, 8\nv_add_u32 v%d, s60, v11" % (M0 + 1))
        a("s_lshl_b32 s60, s44, 14\ns_add_u32 s51, s51, s60")
        a.wait_all()
        a.poll_check(ol, range(OA, OA + 8), M0)
        a.stamp(9)
        for s in range(2):
            for dd in range(4):
                a("v_mfma_f32_16x16x32_bf16 %s, %s, %s, %s" % (a.v(AC + 4 * dd, 4), a.v(OA + 4 * s, 4), a.v(VR + 16 * s + 4 * dd, 4), "0" if s == 0 else a.v(AC + 4 * dd, 4)))
        a("s_nop 4")
        for dd in range(4): a("v_mul_f32 v%d, v%d, v%d" % (TB + dd, AC + 4 * dd, WT))
        for r in range(1, 4):
            for dd in range(4): a("v_fmac_f32 v%d, v%d, v%d" % (TB + dd, AC + 4 * dd + r, WT + r))
        a("ds_write_b128 v6, %s offset:%d" % (a.v(TB, 4), YB))
        a("s_waitcnt lgkmcnt(0)")
        a("s_barrier")
        a("s_cmp_ge_u32 s44, 4\ns_cbranch_scc1 L_fin")
        for i in range(4):
            a("ds_read2st64_b32 %s, v%d offset0:%d offset1:%d" % (a.v(TB + 2 * i, 2), M0 + 1, YB // 256 + 8 * i, YB // 256 + 8 * i + 4))
        a("s_waitcnt lgkmcnt(2)")
        a("v_pk_add_f32 %s, %s, %s" % (a.v(TB, 2), a.v(TB, 2), a.v(TB + 2, 2)))
        a("s_waitcnt lgkmcnt(0)")
        a("v_pk_add_f32 %s, %s, %s" % (a.v(TB + 4, 2), a.v(TB + 4, 2), a.v(TB + 6, 2)))
        a("v_pk_add_f32 %s, %s, %s" % (a.v(TB, 2), a.v(TB, 2), a.v(TB + 4, 2)))
        a("v_add_f32 v%d, v%d, v%d" % (TB, TB, TB + 1))
        a("v_min_u32 v%d, -2, v%d" % (TB, TB))
        a("buffer_store_dword v%d, v11, s[24:27], s51 offen sc1" % TB)
        a.stamp(10)
        a("s_cmp_lg_u32 s44, 0\ns_cbranch_scc1 L_fin")
        a("""
        v_lshrrev_b32 v14, 3, v1
        v_lshlrev_b32 v14, 11, v14
        v_and_b32 v15, 7, v1
        v_lshl_add_u32 v14, v15, 4, v14         ; sg*2048 + c*16
        s_lshl_b32 s60, s4, 14
        s_lshl_b32 s61, s49, 7
        s_add_u32 s58, s60, s61
        s_add_u32 s58, s58, %d                  ; Y inbox
        s_mul_i32 s60, s4, %d
        s_add_u32 s59, s60, s61
        s_add_u32 s59, s59, %d                  ; P inbox
        s_add_u32 s60, s59, 16384
        s_add_u32 s61, s59, 32768
        s_add_u32 s62, s59, 49152
        v_mov_b32 v12, 0x%x
        v_cmp_gt_u32 vcc, 32, v1
        v_lshlrev_b32 v15, 3, v15               ; out voffset c*8
        s_nop 0
        v_cndmask_b32 v13, v12, v14, vcc        ; 4th P load only for sg<4 (OOB reads give 0)
        """ % (Y_OFF, 28 * 2048, P_OFF, OOB))
        yl = ["buffer_load_dwordx4 %s, v14, s[24:27], s58 offen sc1" % a.v(KR, 4)]
        a("s_sleep 8")
        a(yl[0]); a("s_waitcnt vmcnt(0)")
        a.poll_check(["s_sleep 4"] + yl, range(KR, KR + 4), M0)
        def red8(base):
            a("s_nop 1")
            for i in range(4): a("v_add_f32_dpp v%d, v%d, v%d row_ror:8 row_mask:0xf bank_mask:0xf" % (base + i, base + i, base + i))
            for sw in ("v_permlane16_swap_b32", "v_permlane32_swap_b32"):
                for i in range(4): a("v_mov_b32 v%d, v%d" % (TB + i, base + i))
                for i in range(4): a("%s v%d, v%d" % (sw, base + i, TB + i))
                for i in range(4): a("v_add_f32 v%d, v%d, v%d" % (base + i, base + i, TB + i))
        def addround(base, other):
            a("v_cvt_pk_bf16_f32 v%d, v%d, v%d" % (TB + 8, base, base + 1))
            a("v_cvt_pk_bf16_f32 v%d, v%d, v%d" % (TB + 9, base + 2, base + 3))
            for i in range(2):
                a("v_lshlrev_b32 v%d, 16, v%d" % (base + 2 * i, TB + 8 + i))
                a("v_and_b32 v%d, 0xffff0000, v%d" % (base + 2 * i + 1, TB + 8 + i))
            for i in range(4): a("v_add_f32 v%d, v%d, v%d" % (base + i, base + i, other + i))
            a("v_cvt_pk_bf16_f32 v%d, v%d, v%d" % (TB + 8, base, base + 1))
            a("v_cvt_pk_bf16_f32 v%d, v%d, v%d" % (TB + 9, base + 2, base + 3))
        red8(KR)
        for i in range(2):
            a("v_lshlrev_b32 v%d, 16, v%d" % (KR + 4 + 2 * i, XR + i))
            a("v_and_b32 v%d, 0xffff0000, v%d" % (KR + 5 + 2 * i, XR + i))
        addround(KR, KR + 4)
        for i in range(2):
            a("v_lshlrev_b32 v%d, 16, v%d" % (KR + 4 + 2 * i, TB + 8 + i))
            a("v_and_b32 v%d, 0xffff0000, v%d" % (KR + 5 + 2 * i, TB + 8 + i))
        PB = KR + 8
        pl = ["buffer_load_dwordx4 %s, v%d, s[24:27], s%d offen sc1" % (a.v(PB + 4 * i, 4), 14 if i < 3 else 13, 59 + i) for i in range(4)]
        a("s_lshl_b32 s63, s4, 10\ns_lshl_b32 s58, s49, 6\ns_add_u32 s63, s63, s58")
        for l in pl: a(l)
        a("s_waitcnt vmcnt(0)")
        a.poll_check(pl, range(PB, PB + 16), M0)
        a.stamp(11)
        for i in range(2):
            a("v_pk_add_f32 %s, %s, %s" % (a.v(PB + 2 * i, 2), a.v(PB + 2 * i, 2), a.v(PB + 4 + 2 * i, 2)))
            a("v_pk_add_f32 %s, %s, %s" % (a.v(PB + 8 + 2 * i, 2), a.v(PB + 8 + 2 * i, 2), a.v(PB + 12 + 2 * i, 2)))
        for i in range(2):
            a("v_pk_add_f32 %s, %s, %s" % (a.v(PB + 2 * i, 2), a.v(PB + 2 * i, 2), a.v(PB + 8 + 2 * i, 2)))
        red8(PB)
        addround(PB, KR + 4)
        a("s_mov_b64 exec, 0xff")
        a("buffer_store_dwordx2 %s, v15, s[32:35], s63 offen" % a.v(TB + 8, 2))
        a("s_mov_b64 exec, -1")
        a("s_branch L_fin")

    def tailF(XR):
        a("""
        s_and_b32 s58, s49, 3
        s_lshl_b32 s58, s58, 15
        s_lshr_b32 s60, s44, 2
        s_lshl_b32 s60, s60, 14
        s_add_u32 s58, s58, s60
        s_add_u32 s58, s58, %d
        s_add_u32 s59, s58, 4096
        s_add_u32 s60, s58, 8192
        s_add_u32 s61, s58, 12288
        v_and_b32 v14, 255, v0
        v_lshlrev_b32 v14, 3, v14
        """ % Y_OFF)
        YR = AC
        yl = ["buffer_load_dwordx2 %s, v14, s[24:27], s%d offen offset:%d sc1" % (a.v(YR + 2 * k, 2), 58 + k // 2, 2048 * (k % 2)) for k in range(8)]
        for s in range(2):
            a.wait("G%d" % (8 * s + 7))
            for dd in range(8):
                a.transpose(KR + 32 * s, 4, VR + 32 * s + 4 * dd, dd)
        for l in yl: a.vm("yl", l)
        a.wait("W15")
        for s in range(2):
            for dd in range(4):
                a.transpose(WR + 16 * s, 2, KR + 16 * s + 4 * dd, dd)
        a("""
        v_lshlrev_b32 v15, 2, v0                ; HB write tid*4
        s_lshl_b32 s62, s44, 3
        v_mov_b32 v12, s62                      ; SB write w*8
        s_lshr_b32 s62, s44, 2
        s_lshl_b32 s62, s62, 5
        v_mov_b32 v13, s62                      ; SB read b2*32
        v_and_b32 v%d, 1, v1
        v_lshlrev_b32 v%d, 10, v%d
        v_lshl_add_u32 v%d, v3, 4, v%d
        s_lshl_b32 s62, s44, 7
        v_add_u32 v%d, s62, v%d                 ; HB operand read: (n&1)*1024 + w*128 + g*16
        v_lshlrev_b32 v%d, 9, v2
        v_lshl_add_u32 v%d, v3, 7, v%d
        s_lshl_b32 s62, s44, 10
        v_add_u32 v%d, s62, v%d                 ; GB write: w*1024 + n*512 + g*128
        s_lshl_b32 s62, s44, 9
        v_add_u32 v%d, s62, v11                 ; GB read: b2*512 + e*4 (waves 0,1)
        v_lshlrev_b32 v%d, 1, v0                ; HH write tid*2
        v_bfe_u32 v%d, v1, 2, 1
        v_lshlrev_b32 v%d, 7, v%d
        v_lshl_add_u32 v%d, v3, 4, v%d          ; HH read: ((m>>2)&1)*128 + g*16
        v_lshlrev_b32 v%d, 16, v%d
        v_and_b32 v%d, 0xffff0000, v%d
        """ % (M0 + 1, M0 + 1, M0 + 1, M0 + 1, M0 + 1, M0 + 1, M0 + 1,
               M0 + 2, M0 + 2, M0 + 2, M0 + 2, M0 + 2, M0 + 3, M0 + 4,
               M0 + 5, M0 + 5, M0 + 5, M0 + 5, M0 + 5, M0 + 10, XR, M0 + 11, XR))
        a.wait_all()
        a.poll_check(yl, range(YR, YR + 16), M0)
        a.stamp(9)
        for i in range(4): a("v_pk_add_f32 %s, %s, %s" % (a.v(YR + 4 * i, 2), a.v(YR + 4 * i, 2), a.v(YR + 4 * i + 2, 2)))
        for i in range(2): a("v_pk_add_f32 %s, %s, %s" % (a.v(YR + 8 * i, 2), a.v(YR + 8 * i, 2), a.v(YR + 8 * i + 4, 2)))
        a("v_pk_add_f32 %s, %s, %s" % (a.v(YR, 2), a.v(YR, 2), a.v(YR + 8, 2)))
        a("v_cvt_pk_bf16_f32 v%d, v%d, v%d" % (TB, YR, YR + 1))
        a("v_lshlrev_b32 v%d, 16, v%d" % (YR, TB))
        a("v_and_b32 v%d, 0xffff0000, v%d" % (YR + 1, TB))
        a("v_pk_add_f32 %s, %s, %s" % (a.v(YR, 2), a.v(YR, 2), a.v(M0 + 10, 2)))
        a("v_cvt_pk_bf16_f32 v%d, v%d, v%d" % (TB, YR, YR + 1))
        a("v_lshlrev_b32 v%d, 16, v%d" % (YR, TB))
        a("v_and_b32 v%d, 0xffff0000, v%d" % (YR + 1, TB))
        S1, S2 = TB + 2, TB + 3
        a("v_add_f32 v%d, v%d, v%d" % (S1, YR, YR + 1))
        a("v_mul_f32 v%d, v%d, v%d" % (S2, YR, YR))
        a("v_fmac_f32 v%d, v%d, v%d" % (S2, YR + 1, YR + 1))
        a("s_nop 0")
        a.allreduce("v_add_f32", [S1, S2], [TB + 4, TB + 5])
        a("s_mov_b64 exec, 1")
        a("ds_write_b64 v12, %s offset:%d" % (a.v(S1, 2), SB))
        a("s_mov_b64 exec, -1")
        a("s_waitcnt lgkmcnt(0)")
        a("s_barrier")
        a("ds_read_b128 %s, v13 offset:%d" % (a.v(TB + 4, 4), SB))
        a("ds_read_b128 %s, v13 offset:%d" % (a.v(TB + 8, 4), SB + 16))
        a("s_waitcnt lgkmcnt(0)")
        a("v_pk_add_f32 %s, %s, %s" % (a.v(TB + 4, 2), a.v(TB + 4, 2), a.v(TB + 6, 2)))
        a("v_pk_add_f32 %s, %s, %s" % (a.v(TB + 8, 2), a.v(TB + 8, 2), a.v(TB + 10, 2)))
        a("v_pk_add_f32 %s, %s, %s" % (a.v(S1, 2), a.v(TB + 4, 2), a.v(TB + 8, 2)))
        a("v_mul_f32 v%d, 0x%x, v%d" % (S1, f2u(1.0 / 512), S1))
        a("v_mul_f32 v%d, 0x%x, v%d" % (S2, f2u(1.0 / 512), S2))
        a("v_fma_f32 v%d, -v%d, v%d, v%d" % (S2, S1, S1, S2))
        a("v_max_f32 v%d, 0, v%d" % (S2, S2))
        ln_scale(S1, S2, TB + 4)
        a("v_sub_f32 v%d, v%d, v%d" % (YR, YR, S1))
        a("v_sub_f32 v%d, v%d, v%d" % (YR + 1, YR + 1, S1))
        a("v_cvt_pk_bf16_f32 v%d, v%d, v%d" % (TB, YR, YR + 1))
        a("v_lshlrev_b32 v%d, 16, v%d" % (YR, TB))
        a("v_and_b32 v%d, 0xffff0000, v%d" % (YR + 1, TB))
        a("v_mul_f32 v%d, v%d, v%d" % (YR, YR, S2))
        a("v_mul_f32 v%d, v%d, v%d" % (YR + 1, YR + 1, S2))
        a("v_cvt_pk_bf16_f32 v%d, v%d, v%d" % (TB, YR, YR + 1))
        a("ds_write_b32 v15, v%d offset:%d" % (TB, HB))
        a("s_waitcnt lgkmcnt(0)")
        a("s_barrier")
        for s in range(2): a("ds_read_b128 %s, v%d offset:%d" % (a.v(TB + 4 * s, 4), M0 + 1, HB + 64 * s))
        a("s_mov_b32 s62, 0x00030003\ns_mov_b32 s63, 0x00030003")
        for s in range(2):
            a("s_waitcnt lgkmcnt(%d)" % (1 - s))
            for dd in range(8):
                a("v_mfma_f32_16x16x32_bf16 %s, %s, %s, %s" % (a.v(AC + 4 * dd, 4), a.v(VR + 32 * s + 4 * dd, 4), a.v(TB + 4 * s, 4), "0" if s == 0 else a.v(AC + 4 * dd, 4)))
        a("s_mov_b64 exec, s[62:63]")
        for dd in range(8):
            if dd == 7: a("s_nop 0")
            a("ds_write_b128 v%d, %s offset:%d" % (M0 + 2, a.v(AC + 4 * dd, 4), YB + 16 * dd))
        a("s_mov_b64 exec, -1")
        a("s_waitcnt lgkmcnt(0)")
        a("s_barrier")
        a.stamp(10)
        Ls = a.label("Lhh")
        a("s_cmp_ge_u32 s44, 2\ns_cbranch_scc1 %s" % Ls)
        for i in range(8):
            a("ds_read2st64_b32 %s, v%d offset0:%d offset1:%d" % (a.v(TB + 2 * i, 2), M0 + 3, YB // 256 + 4 * i, YB // 256 + 4 * i + 1))
        a("s_waitcnt lgkmcnt(4)")
        a("v_pk_add_f32 %s, %s, %s" % (a.v(TB, 2), a.v(TB, 2), a.v(TB + 2, 2)))
        a("v_pk_add_f32 %s, %s, %s" % (a.v(TB + 4, 2), a.v(TB + 4, 2), a.v(TB + 6, 2)))
        a("s_waitcnt lgkmcnt(0)")
        a("v_pk_add_f32 %s, %s, %s" % (a.v(TB + 8, 2), a.v(TB + 8, 2), a.v(TB + 10, 2)))
        a("v_pk_add_f32 %s, %s, %s" % (a.v(TB + 12, 2), a.v(TB + 12, 2), a.v(TB + 14, 2)))
        a("v_pk_add_f32 %s, %s, %s" % (a.v(TB, 2), a.v(TB, 2), a.v(TB + 4, 2)))
        a("v_pk_add_f32 %s, %s, %s" % (a.v(TB + 8, 2), a.v(TB + 8, 2), a.v(TB + 12, 2)))
        a("v_pk_add_f32 %s, %s, %s" % (a.v(TB, 2), a.v(TB, 2), a.v(TB + 8, 2)))
        a("v_cvt_pk_bf16_f32 v%d, v%d, v%d" % (TB + 2, TB, TB + 1))
        a("v_lshlrev_b32 v%d, 16, v%d" % (TB, TB + 2))
        a("v_and_b32 v%d, 0xffff0000, v%d" % (TB + 1, TB + 2))
        a("v_mul_f32 v%d, v%d, v%d" % (TB, TB, TB + 1))
        a("v_cvt_pk_bf16_f32 v%d, v%d, v%d" % (TB, TB, TB))
        a("ds_write_b16 v%d, v%d offset:%d" % (M0 + 4, TB, HH))
        a("s_waitcnt lgkmcnt(0)")
        a("%s:" % Ls)
        a("s_barrier")
        for s in range(2): a("ds_read_b128 %s, v%d offset:%d" % (a.v(TB + 4 * s, 4), M0 + 5, HH + 64 * s))
        for s in range(2):
            a("s_waitcnt lgkmcnt(%d)" % (1 - s))
            for dd in range(4):
                a("v_mfma_f32_16x16x32_bf16 %s, %s, %s, %s" % (a.v(AC + 4 * dd, 4), a.v(TB + 4 * s, 4), a.v(KR + 16 * s + 4 * dd, 4), "0" if s == 0 else a.v(AC + 4 * dd, 4)))
        a("s_nop 4")
        for dd in range(4): a("v_min_u32 v%d, -2, v%d" % (TB + 8 + dd, AC + 4 * dd))
        a("buffer_store_dwordx4 %s, v10, s[24:27], 0 offen sc1" % a.v(TB + 8, 4))
        a.stamp(11)
        a("s_branch L_fin")

    a("L_pathO:")
    late("O")
    a("L_pathF:")
    late("F")
    a("L_fin:")
    if diag:
        a.stamp(12)
        a("s_waitcnt lgkmcnt(0) vmcnt(0)")
        a("s_cmp_lg_u32 s44, 0\ns_cbranch_scc1 L_end")
        a("s_lshl_b32 s3, s2, 7\ns_add_u32 s3, s3, %d" % STAMP_OFF)
        for i in range(32): a("v_mov_b32 v%d, s%d" % (16 + i, 64 + i))
        a("v_mov_b32 v2, 0\ns_mov_b64 exec, 1")
        for i in range(8): a("buffer_store_dwordx4 v[%d:%d], v2, s[24:27], s3 offen offset:%d" % (16 + 4 * i, 19 + 4 * i, 16 * i))
    a("L_end:")
    a("s_endpgm")
    body = a.text()
    errs = hazard.check(body)
    for e in errs: print(e)
    ref = open("cdna_kernels/%s.s.ref" % NAME).read().split("\n")
    head = [l for l in ref if l.startswith(";") and "@launch" not in l and "Override" not in l and "grid=ceil" not in l]
    txt = "\n".join(head) + "\n" + header("@launch grid=(256,1,1) block=(512,1,1) lds=%d" % LDS_BYTES) + kernel_begin(kn) + body + '.section .rodata,"a"\n' + kd(kn, 256)
    open(fname, "w").write(txt)

if __name__ == "__main__":
    gen("k_diag.s", diag=True)
    gen("k.s", diag=False)
```
